```python
import torch

def _softmax(x, axis=-1):
    return torch.softmax(x, dim=axis)
def _gelu(x):
    return torch.nn.functional.gelu(x, approximate="tanh")
def _silu(x):
    return torch.nn.functional.silu(x)
def _sigmoid(x):
    return torch.sigmoid(x)
def _layernorm(x, axis=-1, eps=1e-5):
    m = x.mean(dim=axis, keepdim=True)
    v = x.var(dim=axis, keepdim=True, unbiased=False)
    return (x - m) / torch.sqrt(v + eps)
def _scatter_add(tgt, idx, src, axis=0):
    return tgt.clone().index_add_(axis, idx, src)
def _segment_sum(src, seg, n):
    out = torch.zeros((n,) + src.shape[1:], dtype=src.dtype)
    return out.index_add_(0, seg, src)
def _pad(x, pw):
    flat = tuple(v for pair in reversed(pw) for v in pair)
    return torch.nn.functional.pad(x, flat)

kernel_name = 'concat_heads__sliding_block_cached__sliding_block_cached__decode'

def setup_inputs():

    _w = (lambda a: (lambda t: t.to(torch.bfloat16) if t.is_floating_point() else t)(torch.as_tensor(a)))
    def _A_setup():
        B, Sq, D = 1, 1, 512
        Hq, Hkv, Sk, Dh = 32, 8, 32768, 128
        assert Hq % Hkv == 0, (Hq, Hkv)
        return {
            "x": _w((lambda *s: torch.randn(*s, dtype=torch.bfloat16) * 0.8)(B, Sq, D)),
            "k_cache": _w((lambda *s: torch.randn(*s, dtype=torch.bfloat16) * 0.8)(B, Hkv, Sk, Dh)),
            "v_cache": _w((lambda *s: torch.randn(*s, dtype=torch.bfloat16) * 0.05)(B, Hkv, Sk, Dh)),
            "wq": _w((lambda *s: torch.randn(*s, dtype=torch.bfloat16) * 0.8)(D, Hq * Dh) * (D ** -0.5)),
            "wo": _w((lambda *s: torch.randn(*s, dtype=torch.bfloat16) * 0.05)(Hq * Dh, D) * ((Hq * Dh) ** -0.5)),
        }
    _A_in = _A_setup()

    def _B_setup():
        B, Sq, D = 1, 1, 512
        Hq, Hkv, Sk, Dh = 32, 8, 32768, 128
        assert Hq % Hkv == 0, (Hq, Hkv)
        return {
            "x": _w((lambda *s: torch.randn(*s, dtype=torch.bfloat16) * 0.8)(B, Sq, D)),
            "k_cache": _w((lambda *s: torch.randn(*s, dtype=torch.bfloat16) * 0.8)(B, Hkv, Sk, Dh)),
            "v_cache": _w((lambda *s: torch.randn(*s, dtype=torch.bfloat16) * 0.05)(B, Hkv, Sk, Dh)),
            "wq": _w((lambda *s: torch.randn(*s, dtype=torch.bfloat16) * 0.8)(D, Hq * Dh) * (D ** -0.5)),
            "wo": _w((lambda *s: torch.randn(*s, dtype=torch.bfloat16) * 0.05)(Hq * Dh, D) * ((Hq * Dh) ** -0.5)),
        }
    _B_in = _B_setup()

    return {
        "A_x": _A_in["x"],
        "A_k_cache": _A_in["k_cache"],
        "A_v_cache": _A_in["v_cache"],
        "A_wq": _A_in["wq"],
        "A_wo": _A_in["wo"],
        "B_x": _B_in["x"],
        "B_k_cache": _B_in["k_cache"],
        "B_v_cache": _B_in["v_cache"],
        "B_wq": _B_in["wq"],
        "B_wo": _B_in["wo"],
    }

def reference(A_x, A_k_cache, A_v_cache, A_wq, A_wo, B_x, B_k_cache, B_v_cache, B_wq, B_wo):
    def _A_ref(x, k_cache, v_cache, wq, wo):
        B, Sq, D = x.shape
        Hq, Dh = 32, 128
        Hkv, Sk = k_cache.shape[1], k_cache.shape[2]
        W = min(4096, max(256, Sk // 4))
        rep = Hq // Hkv
        q = (lambda x, *d: x.permute(*d))((x @ wq).reshape(B, Sq, Hq, Dh), 0, 2, 1, 3)
        k = (lambda x, n, axis: torch.repeat_interleave(x, n, dim=axis))(k_cache[:, :, Sk - W:, :], rep, axis=1)
        v = (lambda x, n, axis: torch.repeat_interleave(x, n, dim=axis))(v_cache[:, :, Sk - W:, :], rep, axis=1)
        scores = torch.einsum("bhqd,bhkd->bhqk", q, k) * (Dh ** -0.5)
        p = _softmax(scores, axis=-1)
        o = torch.einsum("bhqk,bhkd->bhqd", p, v)
        return (lambda x, *d: x.permute(*d))(o, 0, 2, 1, 3).reshape(B, Sq, Hq * Dh) @ wo

    def _B_ref(x, k_cache, v_cache, wq, wo):
        B, Sq, D = x.shape
        Hq, Dh = 32, 128
        Hkv, Sk = k_cache.shape[1], k_cache.shape[2]
        W = min(4096, max(256, Sk // 4))
        rep = Hq // Hkv
        q = (lambda x, *d: x.permute(*d))((x @ wq).reshape(B, Sq, Hq, Dh), 0, 2, 1, 3)
        k = (lambda x, n, axis: torch.repeat_interleave(x, n, dim=axis))(k_cache[:, :, Sk - W:, :], rep, axis=1)
        v = (lambda x, n, axis: torch.repeat_interleave(x, n, dim=axis))(v_cache[:, :, Sk - W:, :], rep, axis=1)
        scores = torch.einsum("bhqd,bhkd->bhqk", q, k) * (Dh ** -0.5)
        p = _softmax(scores, axis=-1)
        o = torch.einsum("bhqk,bhkd->bhqd", p, v)
        return (lambda x, *d: x.permute(*d))(o, 0, 2, 1, 3).reshape(B, Sq, Hq * Dh) @ wo

    a = _A_ref(A_x, A_k_cache, A_v_cache, A_wq, A_wo)
    b = _B_ref(B_x, B_k_cache, B_v_cache, B_wq, B_wo)
    return torch.concatenate([a, b], axis=-1)
```

```python
KN = "concat_heads__sliding_block_cached__sliding_block_cached__decode_kernel"
class A:
    def __init__(self):
        self.l = []
    def __call__(self, s):
        for line in s.strip("\n").split("\n"):
            self.l.append("    " + line.strip() if not line.strip().endswith(":") else line.strip())
    def text(self):
        return "\n".join(self.l) + "\n"
def wrap(body, grid, block, lds, vgpr, sgpr=100, accum=None, header=""):
    if accum is None: accum = (vgpr + 3) // 4 * 4
    return f"""{header}; @launch grid=({grid},1,1) block=({block},1,1) lds={lds}
.amdgcn_target "amdgcn-amd-amdhsa--gfx950"
.text
.globl {KN}
.p2align 8
.type {KN},@function
{KN}:
{body}
.section .rodata,"a"
.p2align 6
.amdhsa_kernel {KN}
  .amdhsa_next_free_vgpr {vgpr}
  .amdhsa_next_free_sgpr {sgpr}
  .amdhsa_accum_offset {accum}
  .amdhsa_group_segment_fixed_size 0
  .amdhsa_kernarg_size 104
  .amdhsa_user_sgpr_count 2
  .amdhsa_user_sgpr_kernarg_segment_ptr 1
  .amdhsa_system_sgpr_workgroup_id_x 1
.end_amdhsa_kernel
"""
```

```python
import re, sys
def regs(tok):
    tok = tok.strip()
    tok = re.sub(r"^-|^abs\(|\)$|^\|", "", tok).rstrip("|")
    m = re.fullmatch(r"([vas])(\d+)", tok)
    if m: return {(m.group(1), int(m.group(2)))}
    m = re.fullmatch(r"([vas])\[(\d+):(\d+)\]", tok)
    if m: return {(m.group(1), i) for i in range(int(m.group(2)), int(m.group(3)) + 1)}
    if tok == "vcc": return {("s", 106), ("s", 107)}
    if tok == "exec": return {("s", 126), ("s", 127)}
    if tok == "m0": return {("s", 124)}
    return set()
TRANS = ("v_exp_f32", "v_log_f32", "v_rcp_f32", "v_rsq_f32", "v_sqrt_f32")
def parse(line):
    line = line.split(";")[0].strip()
    if not line or line.endswith(":") or line.startswith("."): return None
    p = line.split(None, 1)
    mn = p[0]
    rest = p[1] if len(p) > 1 else ""
    ops = [o.strip() for o in re.split(r",(?![^\[]*\])", rest)]
    mods = ""
    if ops:
        last = ops[-1].split(None, 1)
        if last:
            ops[-1] = last[0]
            mods = last[1] if len(last) > 1 else ""
    return mn, ops, mods, line
def rw(mn, ops, mods):
    R, Wr = set(), set()
    o = [regs(x) for x in ops]
    if mn.startswith(("buffer_store", "global_store", "ds_write", "ds_add_f32")):
        for x in o: R |= x
    elif mn.startswith("buffer_load") and "lds" in mods.split():
        for x in o: R |= x
        R |= regs("m0")
    elif mn.startswith(("v_cmp",)):
        Wr |= o[0]
        for x in o[1:]: R |= x
    elif mn.startswith("v_permlane"):
        Wr |= o[0] | o[1]; R |= o[0] | o[1]
    elif mn.startswith(("s_cmp", "s_cbranch", "s_branch", "s_waitcnt", "s_nop", "s_barrier", "s_endpgm", "s_setprio", "s_sleep", "s_bitcmp")):
        for x in o: R |= x
    else:
        if o: Wr |= o[0]
        for x in o[1:]: R |= x
        if mn.startswith(("v_fmac", "v_dot2c", "v_writelane")) or "dpp" in mn or "row_" in mods or "quad_perm" in mods: R |= o[0]
        if mn.startswith("v_cndmask") and len(ops) == 3: R |= regs("vcc")
    return R, Wr
def check(text):
    ins = [x for x in (parse(l) for l in text.split("\n")) if x]
    info = []
    for mn, ops, mods, line in ins:
        R, Wr = rw(mn, ops, mods)
        info.append((mn, ops, mods, line, R, Wr))
    bad = 0
    for i, (mn, ops, mods, line, R, Wr) in enumerate(info):
        isv = mn.startswith("v_"); ismf = mn.startswith("v_mfma")
        isdpp = "dpp" in mn or "row_" in mods or "quad_perm" in mods
        ismem = mn.startswith(("buffer_", "global_", "ds_"))
        dist = 0
        for j in range(i - 1, max(-1, i - 25), -1):
            pmn, pops, pmods, pline, pR, pW = info[j]
            pv = pmn.startswith("v_"); pmf = pmn.startswith("v_mfma")
            need = 0
            vW = {r for r in pW if r[0] in "va"}; sW = {r for r in pW if r[0] == "s"}
            if pv and not pmf:
                if isdpp and vW & R: need = max(need, 2)
                if mn.startswith("v_permlane") and vW & R: need = max(need, 2)
                if ismf and vW & R: need = max(need, 2)
                if mn.startswith(("v_readlane", "v_readfirstlane")) and vW & R: need = max(need, 1)
                if pmn.startswith(TRANS) and isv and not mn.startswith(TRANS) and vW & R: need = max(need, 1)
                if isv and sW & R: need = max(need, 2)
                if mn.startswith(("buffer_", "global_")) and sW & R: need = max(need, 5)
                if mn.startswith(("v_readlane", "v_writelane")) and len(ops) > 2 and sW & regs(ops[2]): need = max(need, 4)
            if pmf:
                p8 = "32x32" in pmn
                if ismf:
                    srcc = regs(ops[3])
                    if pW & (regs(ops[1]) | regs(ops[2])): need = max(need, 12 if p8 else 8)
                    if pW & srcc: need = max(need, 2 if pW == srcc else (10 if p8 else 6))
                elif (isv or ismem) and pW & (R | Wr): need = max(need, 12 if p8 else 8)
                if isv and not ismf and regs(pops[3]) & Wr: need = max(need, 7 if p8 else 3)
            if pmn.startswith(("buffer_store_dwordx4", "global_store_dwordx4", "buffer_store_dwordx3")) and isv:
                data = regs(pops[0]) if pmn.startswith("buffer") else regs(pops[1])
                if data & Wr: need = max(need, 2)
            if pmn.startswith("s_") and ("s", 124) in pW and mn.startswith("buffer_load") and "lds" in mods.split(): need = max(need, 1)
            if pmn.startswith("s_") and (("s", 126) in pW) and isdpp: pass
            if need > dist:
                print(f"HAZARD need {need} have {dist}:\n   {pline}\n   {line}")
                bad += 1
            if pmn == "s_nop": dist += int(pops[0], 0) + 1
            else: dist += 1
    return bad
if __name__ == "__main__":
    print("hazards:", check(open(sys.argv[1]).read()))
```

```python
import sys
from asmlib import *
import hazard

HEADER = open("concat_heads__sliding_block_cached__sliding_block_cached__decode.s.ref").read().split("; Override launch")[0]

L_K, L_QP, L_QG, L_ML, L_R = 0, 65536, 67584, 71680, 72704
LDS_BYTES = 72704 + 8192
W_Q, W_O, W_F, W_END = 0x1000, 0x20000, 0x100000, 0x180000
SPIN = 1 << 15

def gen(P1=3, INFL=12, stamps=False, wo_wait=None):
    a = A()
    vm = []
    def issue(name, text):
        a(text); vm.append(name)
    def wait(name, extra=""):
        n = len(vm) - 1 - vm.index(name)
        a(f"s_waitcnt vmcnt({n}){extra}")
    VST = 255
    def stamp(i):
        if stamps:
            a(f"s_memrealtime s[90:91]\ns_waitcnt lgkmcnt(0)\nv_writelane_b32 v{VST}, s90, {i}")
    LANE, G4, C16 = 1, 2, 3
    VX, VWQ, VLIN, VWO = 4, 5, 6, 7
    VK = [8, 9, 10, 11]
    KA = [12, 13, 14, 15]
    SA = [16, 17]; SB = [18, 19]
    TAG = 20
    T0, T1, T2, T3 = 21, 22, 23, 24
    XR = 28
    WR = 32
    VR = 64
    KF = 128
    QB = 192
    SC = 208
    AC = 224
    PL = 232
    AO = 240
    MM, LL, LSE, FF = 244, 245, 246, 247
    def v4(b): return f"v[{b}:{b+3}]"
    def v2(b): return f"v[{b}:{b+1}]"
    if stamps: a(f"s_memrealtime s[92:93]")
    a(f"""
    s_cmp_ge_u32 s2, 256
    s_cbranch_scc1 L_end
    s_lshr_b32 s3, s2, 7
    s_mul_i32 s4, s3, 40
    s_add_u32 s4, s0, s4
    s_addc_u32 s5, s1, 0
    s_load_dwordx2 s[32:33], s[4:5], 0
    s_load_dwordx2 s[24:25], s[4:5], 24
    s_load_dwordx2 s[16:17], s[4:5], 8
    s_load_dwordx2 s[20:21], s[4:5], 16
    s_load_dwordx2 s[28:29], s[4:5], 32
    s_load_dwordx2 s[36:37], s[0:1], 96
    s_load_dwordx2 s[40:41], s[0:1], 80
    v_lshrrev_b32 v{T0}, 6, v0
    v_and_b32 v{LANE}, 63, v0
    s_bfe_u32 s46, s2, 0x30004
    v_readfirstlane_b32 s48, v{T0}
    s_and_b32 s47, s2, 15
    s_mov_b32 s34, 1024
    s_mov_b32 s35, 0x20000
    s_mov_b32 s26, {4<<20}
    s_mov_b32 s27, 0x20000
    s_mov_b32 s18, {64<<20}
    s_mov_b32 s19, 0x20000
    v_lshrrev_b32 v{G4}, 4, v{LANE}
    v_and_b32 v{C16}, 15, v{LANE}
    v_lshlrev_b32 v{VLIN}, 4, v{LANE}
    v_and_b32 v{T0}, 4, v{LANE}
    v_lshlrev_b32 v{T0}, 2, v{T0}
    v_lshl_add_u32 v{VX}, v{G4}, 5, v{T0}
    v_lshrrev_b32 v{T0}, 3, v{LANE}
    v_lshlrev_b32 v{T0}, 16, v{T0}
    v_and_b32 v{T1}, 7, v{LANE}
    v_lshl_add_u32 v{VWQ}, v{T1}, 4, v{T0}
    s_lshr_b32 s50, s47, 3
    s_and_b32 s51, s47, 7
    s_lshl_b32 s52, s50, 2
    s_add_u32 s52, s52, s48
    s_lshl_b32 s53, s52, 7
    s_lshl_b32 s54, s52, 19
    s_lshl_b32 s55, s46, 10
    s_add_u32 s54, s54, s55
    s_lshl_b32 s55, s51, 7
    s_add_u32 s54, s54, s55
    s_lshl_b32 s55, s46, 23
    s_lshl_b32 s56, s47, 16
    s_add_u32 s55, s55, s56
    s_lshl_b32 s57, s48, 10
    s_add_u32 s55, s55, s57
    s_add_u32 s55, s55, {28672*256}
    s_lshl_b32 s58, s48, 14
    v_lshlrev_b32 v{T0}, 2, v{G4}
    v_xor_b32 v{T0}, v{T0}, v{C16}
    v_lshlrev_b32 v{T0}, 4, v{T0}
    v_lshl_add_u32 v{VK[0]}, v{G4}, 8, v{T0}
    v_xor_b32 v{VK[1]}, 16, v{VK[0]}
    v_xor_b32 v{VK[2]}, 32, v{VK[0]}
    v_xor_b32 v{VK[3]}, 48, v{VK[0]}
    s_waitcnt lgkmcnt(0)
    """)
    issue("x", f"buffer_load_dwordx4 {v4(XR)}, v{VX}, s[32:35], s53 offen")
    def ld_wq(t):
        if t == 0:
            issue(f"wq{t}", f"buffer_load_dwordx4 {v4(WR+4*t)}, v{VWQ}, s[24:27], s54 offen nt")
        else:
            issue(f"wq{t}", f"s_add_u32 s49, s54, {t*8192}\nbuffer_load_dwordx4 {v4(WR+4*t)}, v{VWQ}, s[24:27], s49 offen nt")
    def ld_k(T):
        issue(f"k{T}", f"s_add_u32 m0, s58, {L_K + T*1024}\ns_add_u32 s49, s55, {T*4096}\nbuffer_load_dwordx4 v{VK[T&3]}, s[16:19], s49 offen nt lds")
    def txt_v(T):
        return f"s_add_u32 s49, s55, {T*4096}\nbuffer_load_dwordx4 {v4(VR+4*T)}, v{VLIN}, s[20:23], s49 offen nt"
    def txt_wo(t):
        return f"buffer_load_dwordx4 {v4(WR+4*t)}, v{VWO}, s[28:31], s{59 if t < 4 else 62} offen offset:{(t&3)*1024} nt"
    for t in range(8): ld_wq(t)
    nk0 = INFL - 9
    for T in range(nk0): ld_k(T)
    stamp(1)
    a(f"""
    s_lshl_b32 s63, s3, 8
    s_load_dword s61, s[36:37], s63
    s_mov_b32 s22, {64<<20}
    s_mov_b32 s23, 0x20000
    s_mov_b32 s30, {4<<20}
    s_mov_b32 s31, 0x20000
    s_mov_b32 s38, {W_END}
    s_mov_b32 s39, 0x20000
    s_mov_b32 s42, 2048
    s_mov_b32 s43, 0x20000
    s_lshl_b32 s59, s46, 19
    s_lshl_b32 s62, s47, 15
    s_add_u32 s59, s59, s62
    s_lshl_b32 s62, s48, 8
    s_add_u32 s59, s59, s62
    s_add_u32 s62, s59, 4096
    v_lshlrev_b32 v{T0}, 4, v{C16}
    v_lshl_add_u32 v{VWO}, v{G4}, 13, v{T0}
    v_and_b32 v{T0}, 3, v{LANE}
    v_lshlrev_b32 v{T0}, 10, v{T0}
    v_lshrrev_b32 v{T1}, 2, v{C16}
    v_lshl_add_u32 v{T0}, v{T1}, 8, v{T0}
    v_xor_b32 v{T1}, v{G4}, v{C16}
    v_lshl_add_u32 v{T0}, v{T1}, 4, v{T0}
    v_add_u32 v{KA[0]}, s58, v{T0}
    v_xor_b32 v{KA[1]}, 64, v{KA[0]}
    v_xor_b32 v{KA[2]}, 0x80, v{KA[0]}
    v_xor_b32 v{KA[3]}, 0xc0, v{KA[0]}
    v_and_b32 v{T0}, 1, v{LANE}
    v_cmp_eq_u32 vcc, 1, v{T0}
    v_mov_b32 v{T1}, 0x0c0c0100
    v_mov_b32 v{T2}, 0x01000c0c
    v_cndmask_b32 v{T1}, v{T1}, v{T2}, vcc
    v_mov_b32 v{T2}, 0x0c0c0302
    v_mov_b32 v{T3}, 0x03020c0c
    v_cndmask_b32 v{T2}, v{T2}, v{T3}, vcc
    v_and_b32 v{T0}, 2, v{LANE}
    v_cmp_eq_u32 vcc, 2, v{T0}
    v_mov_b32 v{T3}, 0x0c0c0c0c
    s_nop 0
    v_cndmask_b32 v{SA[0]}, v{T1}, v{T3}, vcc
    v_cndmask_b32 v{SA[1]}, v{T2}, v{T3}, vcc
    v_cndmask_b32 v{SB[0]}, v{T3}, v{T1}, vcc
    v_cndmask_b32 v{SB[1]}, v{T3}, v{T2}, vcc
    s_lshl_b32 s64, s3, 3
    s_add_u32 s64, s64, s46
    s_lshl_b32 s65, s64, 12
    s_add_u32 s65, s65, {W_Q}
    s_lshl_b32 s66, s64, 15
    s_add_u32 s66, s66, {W_O}
    s_lshl_b32 s67, s3, 18
    s_add_u32 s67, s67, {W_F}
    s_and_b32 s68, s2, 127
    s_mov_b32 s70, 0x07060500
    s_mov_b32 s71, 0x07060501
    s_mov_b32 s72, 0x07060502
    s_mov_b32 s73, 0x07060503
    s_mov_b32 s74, 0x0c0c0400
    s_mov_b32 s75, 0x04000c0c
    s_mov_b32 s76, 0xffffff00
    s_mov_b32 s77, 0xffff0000
    s_waitcnt lgkmcnt(0)
    s_add_u32 s61, s61, 1
    s_mul_i32 s60, s61, 0x9e3779b1
    v_mov_b32 v{TAG}, s60
    """)
    def abuild(dst, src, half):
        a(f"v_perm_b32 v{dst}, v{src}, v{src}, v{SA[half]}\nv_perm_b32 v{dst+1}, v{src}, v{src}, v{SB[half]}")
    nk = nk0
    for t in range(8):
        wait(f"wq{t}")
        ao = AO + 2 * (t & 1)
        abuild(ao, XR + t // 2, t & 1)
        a("s_nop 1")
        c0 = "0" if t == 0 else v4(AC)
        c1 = "0" if t == 0 else v4(AC + 4)
        a(f"v_mfma_f32_16x16x16_bf16 {v4(AC)}, {v2(ao)}, {v2(WR+4*t)}, {c0}")
        a(f"v_mfma_f32_16x16x16_bf16 {v4(AC+4)}, {v2(ao)}, {v2(WR+4*t+2)}, {c1}")
        ld_k(nk); nk += 1
    stamp(2)
    a(f"""
    v_and_b32 v{T0}, 7, v{LANE}
    v_lshlrev_b32 v{T0}, 5, v{T0}
    v_lshl_add_u32 v{T0}, v{G4}, 8, v{T0}
    s_lshl_b32 s49, s48, 9
    v_add_u32 v{T0}, s49, v{T0}
    s_mov_b32 exec_lo, 0xff0000ff
    s_mov_b32 exec_hi, 0
    s_nop 1
    ds_write_b128 v{T0}, {v4(AC)} offset:{L_QP - 65536 + 0}
    """.replace(f"offset:{L_QP-65536}", "offset:0") if False else f"""
    v_and_b32 v{T0}, 7, v{LANE}
    v_lshlrev_b32 v{T0}, 5, v{T0}
    v_lshl_add_u32 v{T0}, v{G4}, 8, v{T0}
    s_lshl_b32 s49, s48, 9
    s_add_u32 s49, s49, {L_QP}
    v_add_u32 v{T0}, s49, v{T0}
    s_mov_b32 exec_lo, 0xff0000ff
    s_mov_b32 exec_hi, 0
    ds_write_b128 v{T0}, {v4(AC)}
    ds_write_b128 v{T0}, {v4(AC+4)} offset:16
    s_mov_b64 exec, -1
    s_waitcnt lgkmcnt(0)
    s_barrier
    s_cmp_lg_u32 s48, 0
    s_cbranch_scc1 L_noqpub
    v_lshlrev_b32 v{T0}, 4, v{C16}
    v_add_u32 v{T0}, {L_QP}, v{T0}
    """)
    for k in range(8):
        a(f"ds_read_b128 {v4(KF+4*k)}, v{T0} offset:{k*256}")
    a(f"""
    v_and_b32 v{T1}, 1, v{LANE}
    v_lshlrev_b32 v{T1}, 10, v{T1}
    v_bfe_u32 v{T2}, v{LANE}, 1, 2
    v_lshl_add_u32 v{T1}, v{T2}, 8, v{T1}
    v_bfe_u32 v{T2}, v{LANE}, 3, 1
    v_lshl_add_u32 v{T1}, v{T2}, 4, v{T1}
    s_lshl_b32 s49, s50, 11
    s_add_u32 s49, s49, s65
    s_lshl_b32 s69, s51, 5
    s_add_u32 s49, s49, s69
    s_waitcnt lgkmcnt(0)
    """)
    for st in (4, 2, 1):
        for k in range(st):
            a(f"v_pk_add_f32 {v2(KF+4*k)}, {v2(KF+4*k)}, {v2(KF+4*(k+st))}")
            a(f"v_pk_add_f32 {v2(KF+4*k+2)}, {v2(KF+4*k+2)}, {v2(KF+4*(k+st)+2)}")
    for r in range(4):
        a(f"v_perm_b32 v{KF+r}, v{KF+r}, v{TAG}, s{70+r}")
    a(f"""
    s_mov_b64 exec, 0xffff
    buffer_store_dwordx4 {v4(KF)}, v{T1}, s[36:39], s49 offen sc1
    s_mov_b64 exec, -1
    L_noqpub:
    """)
    stamp(3)
    while nk < 16:
        ld_k(nk); nk += 1
    nv = 0
    for _ in range(P1):
        issue(f"v{nv}", txt_v(nv)); nv += 1
    a("s_add_u32 s69, s65, s57")
    POLL1 = f"buffer_load_dwordx4 {v4(PL)}, v{VLIN}, s[36:39], s69 offen sc1"
    issue("p1", POLL1)
    for _ in range(INFL - 1):
        if nv < 16:
            issue(f"v{nv}", txt_v(nv)); nv += 1
    rest = [(f"v{T}", txt_v(T)) for T in range(nv, 16)] + [(f"wo{t}", txt_wo(t)) for t in range(8)]
    wait("k15")
    for tau in range(4):
        for e in range(4):
            a(f"ds_read_b128 {v4(KF+16*tau+4*e)}, v{KA[e]} offset:{tau*4096}")
    wait("p1")
    stamp(4)
    def tagcheck(b):
        return f"""
        v_perm_b32 v{T0}, v{b+1}, v{b}, s74
        v_perm_b32 v{T1}, v{b+3}, v{b+2}, s75
        v_or_b32 v{T0}, v{T0}, v{T1}
        """
    a(tagcheck(PL) + f"""
    v_cmp_ne_u32 vcc, v{T0}, v{TAG}
    s_mov_b32 s78, 0
    s_cbranch_vccz L_q_ok
    s_mov_b32 s78, 1
    """)
    for n, t in rest: a(t)
    a(f"""
    s_mov_b32 s79, {SPIN}
    L_q_spin:
    {POLL1}
    s_sub_u32 s79, s79, 1
    s_cbranch_scc1 L_q_ok
    s_waitcnt vmcnt(0)
    """ + tagcheck(PL) + f"""
    v_cmp_ne_u32 vcc, v{T0}, v{TAG}
    s_cbranch_vccnz L_q_spin
    L_q_ok:
    """)
    stamp(5)
    grp = [0]
    def rest_group(n):
        items = rest[grp[0]:grp[0] + n]
        if not items: return
        lab = f"L_rg{grp[0]}"
        a(f"s_cmp_lg_u32 s78, 0\ns_cbranch_scc1 {lab}")
        for nm, t in items: issue(nm, t)
        a(f"{lab}:")
        grp[0] += n
    for r in range(4):
        a(f"v_and_b32 v{PL+r}, s76, v{PL+r}")
    a(f"""
    s_add_u32 s49, s57, {L_QG}
    v_add_u32 v{T0}, s49, v{VLIN}
    v_add_u32 v{T1}, {L_QG}, v{VLIN}
    ds_write_b128 v{T0}, {v4(PL)}
    s_waitcnt lgkmcnt(0)
    s_barrier
    ds_read_b128 {v4(QB)}, v{T1}
    ds_read_b128 {v4(QB+4)}, v{T1} offset:1024
    ds_read_b128 {v4(QB+8)}, v{T1} offset:2048
    ds_read_b128 {v4(QB+12)}, v{T1} offset:3072
    """)
    rest_group(1)
    a("s_waitcnt lgkmcnt(0)")
    for k in range(4):
        a(f"v_pk_add_f32 {v2(QB+2*k)}, {v2(QB+2*k)}, {v2(QB+8+2*k)}")
    for k in range(4):
        a(f"v_cvt_pk_bf16_f32 v{PL+k}, v{QB+2*k}, v{QB+2*k+1}")
    a("s_nop 1")
    for e in range(4):
        for k in range(4):
            a(f"v_mov_b32_dpp v{QB+4*e+k}, v{PL+k} quad_perm:[{e},{e},{e},{e}] row_mask:0xf bank_mask:0xf")
    a("s_nop 1")
    for e in range(4):
        for tau in range(4):
            c = "0" if e == 0 else v4(SC + 4 * tau)
            a(f"v_mfma_f32_16x16x32_bf16 {v4(SC+4*tau)}, {v4(KF+16*tau+4*e)}, {v4(QB+4*e)}, {c}")
    rest_group(2)
    a("s_nop 7")
    a(f"v_max3_f32 v{T0}, v{SC}, v{SC+1}, v{SC+2}\nv_max3_f32 v{T1}, v{SC+3}, v{SC+4}, v{SC+5}")
    a(f"v_max3_f32 v{T0}, v{T0}, v{SC+6}, v{SC+7}\nv_max3_f32 v{T1}, v{T1}, v{SC+8}, v{SC+9}")
    a(f"v_max3_f32 v{T0}, v{T0}, v{SC+10}, v{SC+11}\nv_max3_f32 v{T1}, v{T1}, v{SC+12}, v{SC+13}")
    a(f"v_max3_f32 v{T0}, v{T0}, v{SC+14}, v{SC+15}\nv_max_f32 v{T0}, v{T0}, v{T1}")
    def xlane(op, reg, tmp):
        a(f"""
        v_mov_b32 v{tmp}, v{reg}
        s_nop 1
        v_permlane16_swap_b32 v{reg}, v{tmp}
        {op} v{reg}, v{reg}, v{tmp}
        v_mov_b32 v{tmp}, v{reg}
        s_nop 1
        v_permlane32_swap_b32 v{reg}, v{tmp}
        {op} v{reg}, v{reg}, v{tmp}
        """)
    xlane("v_max_f32", T0, T1)
    import struct, math
    cs = struct.unpack("<I", struct.pack("<f", 128 ** -0.5 * math.log2(math.e)))[0]
    a(f"s_mov_b32 s80, {cs:#x}\nv_mul_f32 v{MM}, s80, v{T0}")
    for k in range(16):
        a(f"v_fma_f32 v{SC+k}, v{SC+k}, s80, -v{MM}")
    for k in range(16):
        a(f"v_exp_f32 v{SC+k}, v{SC+k}")
    a(f"v_pk_add_f32 {v2(PL)}, {v2(SC)}, {v2(SC+2)}\nv_pk_add_f32 {v2(PL+2)}, {v2(SC+4)}, {v2(SC+6)}")
    a(f"v_pk_add_f32 {v2(PL+4)}, {v2(SC+8)}, {v2(SC+10)}\nv_pk_add_f32 {v2(PL+6)}, {v2(SC+12)}, {v2(SC+14)}")
    a(f"v_pk_add_f32 {v2(PL)}, {v2(PL)}, {v2(PL+2)}\nv_pk_add_f32 {v2(PL+4)}, {v2(PL+4)}, {v2(PL+6)}")
    a(f"v_pk_add_f32 {v2(PL)}, {v2(PL)}, {v2(PL+4)}\nv_add_f32 v{LL}, v{PL}, v{PL+1}")
    xlane("v_add_f32", LL, T1)
    a(f"""
    v_lshrrev_b32 v{T0}, 2, v{C16}
    v_lshlrev_b32 v{T0}, 5, v{T0}
    v_add_u32 v{T2}, {L_ML}, v{T0}
    s_lshl_b32 s49, s48, 2
    v_add_u32 v{T0}, s49, v{T2}
    ds_write2_b32 v{T0}, v{MM}, v{LL} offset0:0 offset1:4
    """)
    stamp(6)
    rest_group(99)
    a(f"""
    s_waitcnt lgkmcnt(0)
    s_barrier
    ds_read_b128 {v4(PL)}, v{T2}
    ds_read_b128 {v4(PL+4)}, v{T2} offset:16
    s_waitcnt lgkmcnt(0)
    v_max3_f32 v{T0}, v{PL}, v{PL+1}, v{PL+2}
    v_max_f32 v{T0}, v{T0}, v{PL+3}
    v_sub_f32 v{PL}, v{PL}, v{T0}
    v_sub_f32 v{PL+1}, v{PL+1}, v{T0}
    v_sub_f32 v{PL+2}, v{PL+2}, v{T0}
    v_sub_f32 v{PL+3}, v{PL+3}, v{T0}
    v_sub_f32 v{MM}, v{MM}, v{T0}
    v_exp_f32 v{PL}, v{PL}
    v_exp_f32 v{PL+1}, v{PL+1}
    v_exp_f32 v{PL+2}, v{PL+2}
    v_exp_f32 v{PL+3}, v{PL+3}
    v_exp_f32 v{MM}, v{MM}
    v_mul_f32 v{LL}, v{PL}, v{PL+4}
    v_fmac_f32 v{LL}, v{PL+1}, v{PL+5}
    v_fmac_f32 v{LL}, v{PL+2}, v{PL+6}
    v_fmac_f32 v{LL}, v{PL+3}, v{PL+7}
    v_rcp_f32 v{FF}, v{LL}
    v_log_f32 v{LSE}, v{LL}
    s_nop 0
    v_mul_f32 v{FF}, v{FF}, v{MM}
    v_add_f32 v{LSE}, v{LSE}, v{T0}
    """)
    for k in range(16):
        a(f"v_mul_f32 v{SC+k}, v{SC+k}, v{FF}")
    for k in range(8):
        a(f"v_cvt_pk_bf16_f32 v{PL+k}, v{SC+2*k}, v{SC+2*k+1}")
    for T in range(16):
        abuild(KF + 2 * T, PL + T // 2, T & 1)
    a(f"""
    v_lshlrev_b32 v{T0}, 4, v{G4}
    ds_bpermute_b32 v{LSE}, v{T0}, v{LSE}
    s_lshl_b32 s49, s48, 11
    s_add_u32 s49, s49, {L_R}
    v_add_u32 v{T0}, s49, v{VLIN}
    s_add_u32 s49, s57, {L_R}
    v_add_u32 v{T1}, s49, v{VLIN}
    v_lshrrev_b32 v{T2}, 2, v{LANE}
    v_lshlrev_b32 v{T2}, 11, v{T2}
    v_and_b32 v{T3}, 3, v{LANE}
    v_lshl_add_u32 v{T2}, v{T3}, 8, v{T2}
    """)
    stamp(7)
    for T in range(16):
        wait(f"v{T}")
        c0 = "0" if T == 0 else v4(AC)
        c1 = "0" if T == 0 else v4(AC + 4)
        a(f"v_mfma_f32_16x16x16_bf16 {v4(AC)}, {v2(KF+2*T)}, {v2(VR+4*T)}, {c0}")
        a(f"v_mfma_f32_16x16x16_bf16 {v4(AC+4)}, {v2(KF+2*T)}, {v2(VR+4*T+2)}, {c1}")
    a(f"""
    s_lshl_b32 s49, s50, 10
    s_add_u32 s49, s49, s66
    s_lshl_b32 s69, s51, 4
    s_add_u32 s49, s49, s69
    s_lshl_b32 s69, s48, 7
    s_add_u32 s49, s49, s69
    s_nop 1
    ds_write_b128 v{T0}, {v4(AC)}
    ds_write_b128 v{T0}, {v4(AC+4)} offset:1024
    s_waitcnt lgkmcnt(0)
    s_barrier
    """)
    stamp(8)
    a(f"""
    s_cmp_ge_u32 s48, 2
    s_cbranch_scc1 L_noopub
    ds_read_b128 {v4(VR)}, v{T1}
    ds_read_b128 {v4(VR+4)}, v{T1} offset:2048
    ds_read_b128 {v4(VR+8)}, v{T1} offset:4096
    ds_read_b128 {v4(VR+12)}, v{T1} offset:6144
    v_mov_b32 v{VR+18}, v{LSE}
    v_mov_b32 v{VR+19}, v{TAG}
    s_waitcnt lgkmcnt(2)
    v_pk_add_f32 {v2(VR)}, {v2(VR)}, {v2(VR+4)}
    v_pk_add_f32 {v2(VR+2)}, {v2(VR+2)}, {v2(VR+6)}
    s_waitcnt lgkmcnt(0)
    v_pk_add_f32 {v2(VR+8)}, {v2(VR+8)}, {v2(VR+12)}
    v_pk_add_f32 {v2(VR+10)}, {v2(VR+10)}, {v2(VR+14)}
    v_pk_add_f32 {v2(VR)}, {v2(VR)}, {v2(VR+8)}
    v_pk_add_f32 {v2(VR+2)}, {v2(VR+2)}, {v2(VR+10)}
    v_cvt_pk_bf16_f32 v{VR+16}, v{VR}, v{VR+1}
    v_cvt_pk_bf16_f32 v{VR+17}, v{VR+2}, v{VR+3}
    buffer_store_dwordx4 {v4(VR+16)}, v{T2}, s[36:39], s49 offen sc1
    L_noopub:
    s_lshl_b32 s69, s47, 11
    s_add_u32 s69, s69, s66
    s_mov_b32 s79, {SPIN}
    """)
    stamp(9)
    if wo_wait is not None:
        wait(f"wo{wo_wait}")
    a(f"""
    L_o_spin:
    buffer_load_dwordx4 {v4(PL)}, v{VLIN}, s[36:39], s69 offen sc1
    buffer_load_dwordx4 {v4(PL+4)}, v{VLIN}, s[36:39], s69 offen offset:1024 sc1
    s_sub_u32 s79, s79, 1
    s_cbranch_scc1 L_o_ok
    s_waitcnt vmcnt(0)
    v_cmp_ne_u32 vcc, v{PL+3}, v{TAG}
    v_cmp_ne_u32 s[82:83], v{PL+7}, v{TAG}
    s_or_b64 vcc, vcc, s[82:83]
    s_cbranch_vccnz L_o_spin
    L_o_ok:
    """)
    stamp(10)
    D8 = ["quad_perm:[1,0,3,2]", "quad_perm:[2,3,0,1]", "row_half_mirror"]
    U = KF
    a(f"v_max_f32 v{T0}, v{PL+2}, v{PL+6}")
    unp = [f"v_lshlrev_b32 v{U}, 16, v{PL}", f"v_and_b32 v{U+1}, s77, v{PL}", f"v_lshlrev_b32 v{U+2}, 16, v{PL+1}", f"v_and_b32 v{U+3}, s77, v{PL+1}",
           f"v_lshlrev_b32 v{U+4}, 16, v{PL+4}", f"v_and_b32 v{U+5}, s77, v{PL+4}", f"v_lshlrev_b32 v{U+6}, 16, v{PL+5}", f"v_and_b32 v{U+7}, s77, v{PL+5}"]
    for k, d in enumerate(D8):
        a(unp[2 * k]); a(unp[2 * k + 1])
        a(f"v_max_f32_dpp v{T0}, v{T0}, v{T0} {d} row_mask:0xf bank_mask:0xf")
    a(f"""
    v_sub_f32 v{T1}, v{PL+2}, v{T0}
    v_sub_f32 v{T2}, v{PL+6}, v{T0}
    v_exp_f32 v{T1}, v{T1}
    v_exp_f32 v{T2}, v{T2}
    {unp[6]}
    {unp[7]}
    v_add_f32 v{U+8}, v{T1}, v{T2}
    """)
    for r in range(4): a(f"v_mul_f32 v{U+r}, v{U+r}, v{T1}")
    for r in range(4): a(f"v_fmac_f32 v{U+r}, v{U+4+r}, v{T2}")
    for d in D8:
        for r in (8, 0, 1, 2, 3):
            a(f"v_add_f32_dpp v{U+r}, v{U+r}, v{U+r} {d} row_mask:0xf bank_mask:0xf")
    a(f"""
    v_rcp_f32 v{U+8}, v{U+8}
    s_nop 0
    v_mul_f32 v{U}, v{U}, v{U+8}
    v_mul_f32 v{U+1}, v{U+1}, v{U+8}
    v_mul_f32 v{U+2}, v{U+2}, v{U+8}
    v_mul_f32 v{U+3}, v{U+3}, v{U+8}
    v_cvt_pk_bf16_f32 v{U+4}, v{U}, v{U+1}
    v_cvt_pk_bf16_f32 v{U+5}, v{U+2}, v{U+3}
    v_cvt_pk_bf16_f32 v{U+6}, v{U}, v{U+1}
    v_cvt_pk_bf16_f32 v{U+7}, v{U+2}, v{U+3}
    v_cvt_pk_bf16_f32 v{U+10}, v{U}, v{U+1}
    v_cvt_pk_bf16_f32 v{U+11}, v{U+2}, v{U+3}
    s_nop 0
    v_mov_b32_dpp v{U+4}, v{U+10} row_ror:8 row_mask:0xf bank_mask:0xc
    v_mov_b32_dpp v{U+5}, v{U+11} row_ror:8 row_mask:0xf bank_mask:0xc
    v_mov_b32_dpp v{U+6}, v{U+10} row_ror:8 row_mask:0xf bank_mask:0x3
    v_mov_b32_dpp v{U+7}, v{U+11} row_ror:8 row_mask:0xf bank_mask:0x3
    """)
    for t in range(8):
        abuild(U + 16 + 2 * t, U + 4 + t // 2, t & 1)
    for t in range(8):
        c0 = "0" if t == 0 else v4(AC)
        c1 = "0" if t == 0 else v4(AC + 4)
        a(f"v_mfma_f32_16x16x16_bf16 {v4(AC)}, {v2(U+16+2*t)}, {v2(WR+4*t)}, {c0}")
        a(f"v_mfma_f32_16x16x16_bf16 {v4(AC+4)}, {v2(U+16+2*t)}, {v2(WR+4*t+2)}, {c1}")
        if t < 7: a("s_nop 0")
    a(f"""
    v_lshlrev_b32 v{T0}, 12, v{C16}
    s_lshl_b32 s49, s48, 16
    s_add_u32 s49, s49, s67
    s_lshl_b32 s69, s68, 4
    s_add_u32 s49, s49, s69
    s_mov_b64 exec, 0xffff
    s_nop 1
    """)
    for r in range(4): a(f"v_perm_b32 v{AC+r}, v{AC+r}, v{TAG}, s{70+r}")
    a(f"buffer_store_dwordx4 {v4(AC)}, v{T0}, s[36:39], s49 offen sc1")
    for r in range(4): a(f"v_perm_b32 v{AC+4+r}, v{AC+4+r}, v{TAG}, s{70+r}")
    a(f"""
    buffer_store_dwordx4 {v4(AC+4)}, v{T0}, s[36:39], s49 offen offset:2048 sc1
    s_mov_b64 exec, -1
    """)
    stamp(11)
    a(f"""
    s_cmp_lg_u32 s48, 0
    s_cbranch_scc1 L_fin
    s_lshl_b32 s69, s68, 11
    s_add_u32 s69, s69, s67
    s_mov_b32 s79, {SPIN}
    L_f_spin:
    buffer_load_dwordx4 {v4(PL)}, v{VLIN}, s[36:39], s69 offen sc1
    buffer_load_dwordx4 {v4(PL+4)}, v{VLIN}, s[36:39], s69 offen offset:1024 sc1
    s_sub_u32 s79, s79, 1
    s_cbranch_scc1 L_f_ok
    s_waitcnt vmcnt(0)
    v_perm_b32 v{T0}, v{PL+1}, v{PL}, s74
    v_perm_b32 v{T1}, v{PL+3}, v{PL+2}, s75
    v_perm_b32 v{T2}, v{PL+5}, v{PL+4}, s74
    v_perm_b32 v{T3}, v{PL+7}, v{PL+6}, s75
    v_or_b32 v{T0}, v{T0}, v{T1}
    v_or_b32 v{T2}, v{T2}, v{T3}
    v_cmp_ne_u32 vcc, v{T0}, v{TAG}
    v_cmp_ne_u32 s[82:83], v{T2}, v{TAG}
    s_or_b64 vcc, vcc, s[82:83]
    s_cbranch_vccnz L_f_spin
    L_f_ok:
    """)
    stamp(12)
    for r in range(8): a(f"v_and_b32 v{PL+r}, s76, v{PL+r}")
    for r in range(4): a(f"v_add_f32 v{PL+r}, v{PL+r}, v{PL+4+r}")
    for d in D8 + ["row_mirror", "row_bcast:15", "row_bcast:31"]:
        rm = {"row_bcast:15": "0xa", "row_bcast:31": "0xc"}.get(d, "0xf")
        for r in range(4):
            a(f"v_add_f32_dpp v{PL+r}, v{PL+r}, v{PL+r} {d} row_mask:{rm} bank_mask:0xf")
    a(f"""
    v_cvt_pk_bf16_f32 v{PL+4}, v{PL}, v{PL+1}
    v_cvt_pk_bf16_f32 v{PL+5}, v{PL+2}, v{PL+3}
    s_lshl_b32 s49, s2, 3
    v_mov_b32 v{T0}, 0
    v_mov_b32 v{T1}, s61
    s_mov_b32 exec_lo, 0
    s_mov_b32 exec_hi, 0x80000000
    buffer_store_dwordx2 {v2(PL+4)}, v{T0}, s[40:43], s49 offen
    s_cmp_lg_u32 s68, 0
    s_cbranch_scc1 L_fin2
    buffer_store_dword v{T1}, v{T0}, s[36:39], s63 offen
    L_fin2:
    s_mov_b64 exec, -1
    L_fin:
    """)
    if stamps:
        a(f"""
        s_waitcnt vmcnt(0)
        """)
        stamp(31)
        a(f"""
        v_writelane_b32 v{VST}, s92, 0
        v_writelane_b32 v{VST}, s78, 34
        s_getreg_b32 s90, hwreg(HW_REG_XCC_ID)
        v_writelane_b32 v{VST}, s90, 32
        s_getreg_b32 s90, hwreg(HW_REG_HW_ID)
        v_writelane_b32 v{VST}, s90, 33
        s_lshl_b32 s90, s2, 10
        s_lshl_b32 s91, s48, 8
        s_add_u32 s90, s90, s91
        s_add_u32 s90, s90, {256<<20}
        s_add_u32 s36, s36, s90
        s_addc_u32 s37, s37, 0
        v_lshlrev_b32 v{T0}, 2, v{LANE}
        global_store_dword v{T0}, v{VST}, s[36:37]
        """)
    a("L_end:\ns_endpgm")
    body = a.text()
    if stamps:
        body = f"    v_mov_b32 v{VST}, 0\n" + body
    nb = hazard.check(body)
    assert nb == 0, nb
    return wrap(body, 256, 256, LDS_BYTES, 256, sgpr=96, header=HEADER)

if __name__ == "__main__":
    import build
    open("k1.s", "w").write(gen())
    build.build("k1.s", "k1.co")
    open("k1s.s", "w").write(gen(stamps=True))
    build.build("k1s.s", "k1s.co")
    print("lds", LDS_BYTES)
```

```python
import sys
from asmlib import *
def gen(depth=None, pol="nt", touch=0, rot="s", order="qkvo", lds=False, W=4, wide=False, ch=None, sh=0):
    a = A()
    NT = (" " + pol) if pol else ""
    vst = 4
    a(f"""
    s_memrealtime s[42:43]
    s_cmp_ge_u32 s2, 256
    s_cbranch_scc1 L_end
    s_and_b32 s3, s2, 7
    s_lshl_b32 s3, s3, 5
    s_and_b32 s4, s2, 8
    s_lshl_b32 s4, s4, 1
    s_lshr_b32 s2, s2, 4
    s_or_b32 s2, s2, s3
    s_or_b32 s2, s2, s4
    s_lshr_b32 s3, s2, 7
    s_lshr_b32 s34, s2, 4
    s_and_b32 s34, s34, 7
    s_and_b32 s35, s2, 15
    s_mul_i32 s3, s3, 40
    s_add_u32 s4, s0, s3
    s_addc_u32 s5, s1, 0
    s_load_dwordx2 s[16:17], s[4:5], 8
    s_load_dwordx2 s[20:21], s[4:5], 16
    s_load_dwordx2 s[24:25], s[4:5], 24
    s_load_dwordx2 s[28:29], s[4:5], 32
    s_load_dwordx2 s[6:7], s[0:1], 96
    s_getpc_b64 s[10:11]
    L_pc:
    v_and_b32 v2, 63, v0
    v_lshlrev_b32 v5, 7, v2
    v_min_u32 v5, L_end-L_pc, v5
    global_load_dword v6, v5, s[10:11]
    v_mov_b32 v{vst}, 0
    v_lshrrev_b32 v1, 6, v0
    s_nop 0
    v_readfirstlane_b32 s33, v1
    s_mov_b32 s18, {64<<20}
    s_mov_b32 s19, 0x20000
    s_mov_b32 s22, {64<<20}
    s_mov_b32 s23, 0x20000
    s_mov_b32 s26, {4<<20}
    s_mov_b32 s27, 0x20000
    s_mov_b32 s30, {4<<20}
    s_mov_b32 s31, 0x20000
    v_lshlrev_b32 v5, 4, v2
    s_lshl_b32 s36, s34, 23
    s_add_u32 s50, s36, {28672*256}
    s_lshl_b32 s53, s33, 10
    s_add_u32 s50, s50, s53
    s_lshl_b32 s44, s34, 19
    s_lshl_b32 s37, s35, 15
    s_add_u32 s44, s44, s37
    s_add_u32 s46, s44, s53
    s_mul_i32 s45, s35, {ch if ch else 65536}
    s_add_u32 s45, s45, s50
    """)
    if rot == "s": a("s_lshl_b32 s37, s35, 12")
    elif rot == "s3": a("s_and_b32 s37, s35, 3\ns_lshl_b32 s37, s37, 12")
    elif rot == "sw": a("s_xor_b32 s37, s35, s33\ns_lshl_b32 s37, s37, 12")
    elif rot == "none": a("s_mov_b32 s37, 0")
    elif rot == "sg": a("s_lshr_b32 s37, s2, 4\ns_mul_i32 s37, s37, 5\ns_add_u32 s37, s37, s35\ns_and_b32 s37, s37, 15\ns_lshl_b32 s37, s37, 12")
    elif rot == "g": a("s_lshr_b32 s37, s2, 4\ns_lshl_b32 s37, s37, 12")
    elif rot == "g5": a("s_lshr_b32 s37, s2, 4\ns_mul_i32 s37, s37, 5\ns_and_b32 s37, s37, 15\ns_lshl_b32 s37, s37, 12")
    elif rot == "hash": a("s_mul_i32 s37, s2, 0x9e3779b1\ns_lshr_b32 s37, s37, 28\ns_lshl_b32 s37, s37, 12")
    if ch: a("s_and_b32 s37, s37, 0x7000\ns_or_b32 s46, s46, s37\ns_mov_b32 s37, 0")
    a("s_or_b32 s45, s45, s37\ns_and_b32 s37, s37, 0x7000\ns_or_b32 s46, s46, s37\ns_waitcnt lgkmcnt(0)")
    if touch:
        a(f"""
        s_cmp_lg_u32 s33, 0
        s_cbranch_scc1 L_nt
        s_mov_b64 exec, 1
        buffer_load_dword v7, v5, s[16:19], s45 offen nt
        buffer_load_dword v7, v5, s[20:23], s45 offen nt
        buffer_load_dword v7, v5, s[28:31], s46 offen nt
        s_mov_b64 exec, -1
        L_nt:
        """)
    if sh:
        a(f"""
        s_bitcmp1_b32 s2, 5
        s_cselect_b32 s60, {'0x40000000, 0' if sh > 0 else '0, 0x40000000'}
        v_add_u32 v9, s60, v5
        s_sub_u32 s61, s45, 0x100000
        """)
    vb = 12
    cnt = dict(q=8, k=16, v=16, o=8)
    if order == "mix":
        loads = []
        for i in range(8): loads += [("q", i), ("k", i)]
        for i in range(8): loads += [("k", 8 + i), ("v", i)]
        for i in range(8): loads += [("v", 8 + i), ("o", i)]
    else:
        loads = [(t, i) for t in order for i in range(cnt[t])]
    for n, (t, i) in enumerate(loads):
        dst = f"v[{vb+4*n}:{vb+4*n+3}]"
        if sh and t == "q" and i >= 8 - abs(sh):
            a(f"s_xor_b32 s48, s46, {i*4096}\nbuffer_load_dwordx4 {dst}, v9, s[24:27], s48 offen nt")
            a(f"s_xor_b32 s48, s61, {i*4096}\nbuffer_load_dwordx4 {dst}, v9, s[20:23], s48 offen nt")
            continue
        if depth and n >= depth: a(f"s_waitcnt vmcnt({depth-1})")
        srd = dict(q="s[24:27]", o="s[28:31]", k="s[16:19]", v="s[20:23]")[t]
        pos = i * 4096
        if ch and t in "kv": pos = (pos // ch) * ch * 16 + pos % ch
        a(f"s_xor_b32 s48, {'s46' if t in 'qo' else 's45'}, {pos}")
        if lds: a(f"s_add_u32 m0, s53, {(n % 32)*4096}\ns_nop 0\nbuffer_load_dwordx4 v5, {srd}, s48 offen{NT} lds")
        else: a(f"buffer_load_dwordx4 {dst}, v5, {srd}, s48 offen{NT}")
    a(f"""
    s_waitcnt vmcnt(0)
    L_end:
    s_endpgm
    """)
    return wrap(a.text(), 256, 256, 135000, vb + 4 * 48)
if __name__ == "__main__":
    import build
    cfgs = {"j0": dict(), "js1": dict(sh=1), "js2": dict(sh=2), "jm1": dict(sh=-1)}
    args = []
    for k, c in cfgs.items():
        open(f"{k}.s", "w").write(gen(**c))
        build.build(f"{k}.s", f"{k}.co")
        args.append(f"{k}:256:135000")
    open("run11.sh", "w").write("cd dev\nfor fl in 4 4 4 4 4 4 3 3; do timeout 250 ./host " + " ".join(args) + " iters=246 flush=$fl check=0 nosync=1 cold=6 iev=1 pre=2000 evmode=3 | cut -c8-13,29-35 | tr '\\n' '|'; echo; done\n")
    print(" ".join(f'"dev/{k}.co",' for k in cfgs))
```

```python
import sys
from asmlib import *
def gen(depth=None, pol="nt", touch=0, rot="s", order="qkvo", lds=False, W=4, wide=False, ch=None, sh=0, swap=None, crot=False, both=False, perm=None):
    a = A()
    NT = (" " + pol) if pol else ""
    vst = 4
    a(f"""
    s_memrealtime s[42:43]
    s_cmp_ge_u32 s2, 256
    s_cbranch_scc1 L_end
    s_and_b32 s3, s2, 7
    s_lshl_b32 s3, s3, 5
    s_and_b32 s4, s2, 8
    s_lshl_b32 s4, s4, 1
    s_lshr_b32 s2, s2, 4
    s_or_b32 s2, s2, s3
    s_or_b32 s2, s2, s4
    s_lshr_b32 s3, s2, 7
    s_lshr_b32 s34, s2, 4
    s_and_b32 s34, s34, 7
    s_and_b32 s35, s2, 15
    s_mul_i32 s3, s3, 40
    s_add_u32 s4, s0, s3
    s_addc_u32 s5, s1, 0
    s_load_dwordx2 s[16:17], s[4:5], 8
    s_load_dwordx2 s[20:21], s[4:5], 16
    s_load_dwordx2 s[24:25], s[4:5], 24
    s_load_dwordx2 s[28:29], s[4:5], 32
    s_load_dwordx2 s[6:7], s[0:1], 96
    s_getpc_b64 s[10:11]
    L_pc:
    v_and_b32 v2, 63, v0
    v_lshlrev_b32 v5, 7, v2
    v_min_u32 v5, L_end-L_pc, v5
    global_load_dword v6, v5, s[10:11]
    v_mov_b32 v{vst}, 0
    v_lshrrev_b32 v1, 6, v0
    s_nop 0
    v_readfirstlane_b32 s33, v1
    s_mov_b32 s18, {64<<20}
    s_mov_b32 s19, 0x20000
    s_mov_b32 s22, {64<<20}
    s_mov_b32 s23, 0x20000
    s_mov_b32 s26, {4<<20}
    s_mov_b32 s27, 0x20000
    s_mov_b32 s30, {4<<20}
    s_mov_b32 s31, 0x20000
    v_lshlrev_b32 v5, 4, v2
    s_lshl_b32 s36, s34, 23
    s_add_u32 s50, s36, {28672*256}
    s_lshl_b32 s53, s33, 10
    s_add_u32 s50, s50, s53
    s_lshl_b32 s44, s34, 19
    s_lshl_b32 s37, s35, 15
    s_add_u32 s44, s44, s37
    s_add_u32 s46, s44, s53
    s_mul_i32 s45, s35, {ch if ch else 65536}
    s_add_u32 s45, s45, s50
    """)
    if rot == "s": a("s_lshl_b32 s37, s35, 12")
    elif rot == "s3": a("s_and_b32 s37, s35, 3\ns_lshl_b32 s37, s37, 12")
    elif rot == "sw": a("s_xor_b32 s37, s35, s33\ns_lshl_b32 s37, s37, 12")
    elif rot == "none": a("s_mov_b32 s37, 0")
    elif rot == "sg": a("s_lshr_b32 s37, s2, 4\ns_mul_i32 s37, s37, 5\ns_add_u32 s37, s37, s35\ns_and_b32 s37, s37, 15\ns_lshl_b32 s37, s37, 12")
    elif rot == "g": a("s_lshr_b32 s37, s2, 4\ns_lshl_b32 s37, s37, 12")
    elif rot == "g5": a("s_lshr_b32 s37, s2, 4\ns_mul_i32 s37, s37, 5\ns_and_b32 s37, s37, 15\ns_lshl_b32 s37, s37, 12")
    elif rot == "hash": a("s_mul_i32 s37, s2, 0x9e3779b1\ns_lshr_b32 s37, s37, 28\ns_lshl_b32 s37, s37, 12")
    if ch: a("s_and_b32 s37, s37, 0x7000\ns_or_b32 s46, s46, s37\n" + (f"s_and_b32 s37, s37, {ch-1}\ns_or_b32 s45, s45, s37\n" if crot else "") + "s_mov_b32 s37, 0")
    if perm == "diag": a("s_mov_b32 s45, s50")
    if perm == "diag2": a("s_lshl_b32 s36, s35, 1\ns_lshr_b32 s45, s35, 3\ns_mul_i32 s45, s45, 0x13\ns_xor_b32 s36, s36, s45\ns_and_b32 s36, s36, 15\ns_lshl_b32 s36, s36, 16\ns_add_u32 s45, s50, s36")
    if perm == "d128": a("s_and_b32 s37, s37, 0xe000")
    if both:
        a(f"""
        s_and_b32 s36, s34, 6
        s_lshl_b32 s36, s36, 23
        s_add_u32 s45, s36, {28672*256}
        s_add_u32 s45, s45, s53
        s_and_b32 s36, s2, 31
        s_lshl_b32 s36, s36, 15
        s_add_u32 s45, s45, s36
        s_and_b32 s37, s37, 0x7000
        """)
    a("s_or_b32 s45, s45, s37\ns_and_b32 s37, s37, 0x7000\ns_or_b32 s46, s46, s37\ns_waitcnt lgkmcnt(0)")
    if swap is not None:
        a(f"""
        s_bitcmp1_b32 s2, {swap}
        s_cbranch_scc0 L_nosw
        s_mov_b64 s[62:63], s[16:17]
        s_mov_b64 s[16:17], s[20:21]
        s_mov_b64 s[20:21], s[62:63]
        L_nosw:
        """)
    if touch:
        a(f"""
        s_cmp_lg_u32 s33, 0
        s_cbranch_scc1 L_nt
        s_mov_b64 exec, 1
        buffer_load_dword v7, v5, s[16:19], s45 offen nt
        buffer_load_dword v7, v5, s[20:23], s45 offen nt
        buffer_load_dword v7, v5, s[28:31], s46 offen nt
        s_mov_b64 exec, -1
        L_nt:
        """)
    if sh:
        a(f"""
        s_bitcmp1_b32 s2, 5
        s_cselect_b32 s60, {'0x40000000, 0' if sh > 0 else '0, 0x40000000'}
        v_add_u32 v9, s60, v5
        s_sub_u32 s61, s45, 0x100000
        """)
    vb = 12
    cnt = dict(q=8, k=16, v=16, o=8)
    if order == "mix":
        loads = []
        for i in range(8): loads += [("q", i), ("k", i)]
        for i in range(8): loads += [("k", 8 + i), ("v", i)]
        for i in range(8): loads += [("v", 8 + i), ("o", i)]
    else:
        loads = [(t, i) for t in order for i in range(cnt[t])]
    for n, (t, i) in enumerate(loads):
        dst = f"v[{vb+4*n}:{vb+4*n+3}]"
        if sh and t == "q" and i >= 8 - abs(sh):
            a(f"s_xor_b32 s48, s46, {i*4096}\nbuffer_load_dwordx4 {dst}, v9, s[24:27], s48 offen nt")
            a(f"s_xor_b32 s48, s61, {i*4096}\nbuffer_load_dwordx4 {dst}, v9, s[20:23], s48 offen nt")
            continue
        if depth and n >= depth: a(f"s_waitcnt vmcnt({depth-1})")
        srd = dict(q="s[24:27]", o="s[28:31]", k="s[16:19]", v="s[20:23]")[t]
        pos = i * 4096
        if perm == "rev" and t in "kv": pos = int(f"{i:04b}"[::-1], 2) * 4096
        if perm == "rot1" and t in "kv": pos = (((i << 1) | (i >> 3)) & 15) * 4096
        if perm == "diag" and t in "kv": pos = i * 65536 + i * 4096
        if perm == "diag2" and t in "kv": pos = i * 65536 + i * 4096
        if perm == "d128" and t in "kv": pos = (i & 1) * 65536 + i * 4096
        if both and t in "kv": pos = (i // 8) * (8 << 20) + (i % 8) * 4096
        if ch and t in "kv": pos = (pos // ch) * ch * 16 + pos % ch
        a(f"s_xor_b32 s48, {'s46' if t in 'qo' else 's45'}, {pos}")
        if lds: a(f"s_add_u32 m0, s53, {(n % 32)*4096}\ns_nop 0\nbuffer_load_dwordx4 v5, {srd}, s48 offen{NT} lds")
        else: a(f"buffer_load_dwordx4 {dst}, v5, {srd}, s48 offen{NT}")
    a(f"""
    s_waitcnt vmcnt(0)
    L_end:
    s_endpgm
    """)
    return wrap(a.text(), 256, 256, 135000, vb + 4 * 48)
if __name__ == "__main__":
    import build
    cfgs = {"j0": dict(), "jrev": dict(perm="rev"), "jrot1": dict(perm="rot1"), "jdiag": dict(perm="diag"), "jdiag2": dict(perm="diag2"), "jd128": dict(perm="d128")}
    args = []
    for k, c in cfgs.items():
        open(f"{k}.s", "w").write(gen(**c))
        build.build(f"{k}.s", f"{k}.co")
        args.append(f"{k}:256:135000")
    open("run11.sh", "w").write("cd dev\nfor fl in 4 4 4 4 4 4 3 3 3; do timeout 250 ./host " + " ".join(args) + " iters=126 flush=$fl check=0 nosync=1 cold=6 iev=1 pre=2000 evmode=3 | cut -c8-14,29-35 | tr '\\n' '|'; echo; done\n")
    print(" ".join(f'"dev/{k}.co",' for k in cfgs))
```
